```python
import torch

def _softmax(x, axis=-1):
    return torch.softmax(x, dim=axis)

def _gelu(x):
    return torch.nn.functional.gelu(x, approximate='tanh')

def _silu(x):
    return torch.nn.functional.silu(x)

def _sigmoid(x):
    return torch.sigmoid(x)

def _layernorm(x, axis=-1, eps=1e-05):
    m = x.mean(dim=axis, keepdim=True)
    v = x.var(dim=axis, keepdim=True, unbiased=False)
    return (x - m) / torch.sqrt(v + eps)

def _scatter_add(tgt, idx, src, axis=0):
    return tgt.clone().index_add_(axis, idx, src)

def _segment_sum(src, seg, n):
    out = torch.zeros((n,) + src.shape[1:], dtype=src.dtype)
    return out.index_add_(0, seg, src)

def _pad(x, pw):
    flat = tuple((v for pair in reversed(pw) for v in pair))
    return torch.nn.functional.pad(x, flat)
kernel_name = 'standalone__autoregressive_conv_wavernn__speech'

def setup_inputs():

    _w = lambda a: (lambda t: t.to(torch.bfloat16) if t.is_floating_point() else t)(torch.as_tensor(a))
    B, T, D, K = (2, 16000, 144, 31)
    return {'x': _w((lambda *s: torch.randn(*s, dtype=torch.bfloat16) * 0.1)(B, T, D)), 'w': _w((lambda *s: torch.randn(*s, dtype=torch.bfloat16) * 0.1)(K, D, 2 * D))}

def reference(x, w):
    B, T, D = x.shape
    K = w.shape[0]
    dil = 2
    pad = (K - 1) * dil
    xp = _pad(x, ((0, 0), (pad, 0), (0, 0)))
    h = torch.einsum('btd,de->bte', xp[:, 0:T, :], w[0])
    for i in range(1, K):
        h = h + torch.einsum('btd,de->bte', xp[:, i * dil:i * dil + T, :], w[i])
    f, g = (h[..., :D].clone(), h[..., D:].clone())
    return torch.tanh(f) * _sigmoid(g)
```

```python
import sys, struct
def fbits(x): return struct.unpack('<I', struct.pack('<f', x))[0]
def kd(name, vg, acc):
    return f'''.amdhsa_kernel {name}
  .amdhsa_next_free_vgpr {vg}
  .amdhsa_next_free_sgpr 102
  .amdhsa_accum_offset {acc}
  .amdhsa_group_segment_fixed_size 0
  .amdhsa_kernarg_size 40
  .amdhsa_user_sgpr_count 2
  .amdhsa_user_sgpr_kernarg_segment_ptr 1
  .amdhsa_system_sgpr_workgroup_id_x 1
.end_amdhsa_kernel
'''
def gen(noise):
    L = []; e = L.append
    e('; @launch kernel=wt_kernel grid=(5022,1,1) block=(256,1,1) lds=0')
    e('; @launch kernel=main_kernel grid=(500,1,1) block=(256,1,1) lds=0')
    e('.amdgcn_target "amdgcn-amd-amdhsa--gfx950"\n.text')
    e('.globl wt_kernel\n.p2align 8\n.type wt_kernel,@function\nwt_kernel:')
    e('s_cmp_ge_u32 s2, 5022\ns_cbranch_scc1 L_wt_done')
    e('s_load_dwordx2 s[4:5], s[0:1], 8\ns_load_dwordx2 s[6:7], s[0:1], 32\ns_waitcnt lgkmcnt(0)')
    e('s_mov_b32 s8, s4\ns_mov_b32 s9, s5\ns_mov_b32 s10, 2571264\ns_mov_b32 s11, 0x20000')
    e('s_mov_b32 s12, s6\ns_mov_b32 s13, s7\ns_mov_b32 s14, 2571264\ns_mov_b32 s15, 0x20000')
    e('s_lshl_b32 s3, s2, 8\nv_add_u32 v1, s3, v0')
    e(f's_mov_b32 s16, {(1<<32)//288+1}\nv_mul_hi_u32 v2, s16, v1')
    e('v_mul_u32_u24 v3, 288, v2\nv_sub_u32 v3, v1, v3')
    e('v_mul_u32_u24 v4, 4464, v3\nv_add_u32 v4, v4, v2\nv_lshlrev_b32 v4, 1, v4\nv_lshlrev_b32 v1, 1, v1')
    e('buffer_load_ushort v5, v1, s[8:11], 0 offen\ns_waitcnt vmcnt(0)')
    e('buffer_store_short v5, v4, s[12:15], 0 offen\ns_waitcnt vmcnt(0)')
    e('L_wt_done:\ns_endpgm')
    e('.globl main_kernel\n.p2align 8\n.type main_kernel,@function\nmain_kernel:')
    e('s_cmp_ge_u32 s2, 500\ns_cbranch_scc1 L_m_done')
    e('s_load_dwordx2 s[4:5], s[0:1], 0\ns_load_dwordx2 s[6:7], s[0:1], 32\ns_load_dwordx2 s[20:21], s[0:1], 16\ns_waitcnt lgkmcnt(0)')
    e('s_cmp_ge_u32 s2, 250\ns_cselect_b32 s16, 4608000, 0\ns_cselect_b32 s17, 250, 0\ns_sub_u32 s17, s2, s17')
    e('s_add_u32 s8, s4, s16\ns_addc_u32 s9, s5, 0\ns_mov_b32 s10, 4608000\ns_mov_b32 s11, 0x20000')
    e('s_mov_b32 s12, s6\ns_mov_b32 s13, s7\ns_mov_b32 s14, 2571264\ns_mov_b32 s15, 0x20000')
    e('s_add_u32 s24, s20, s16\ns_addc_u32 s25, s21, 0\ns_mov_b32 s26, 4608000\ns_mov_b32 s27, 0x20000')
    e('v_and_b32 v1, 15, v0\nv_bfe_u32 v2, v0, 4, 2\nv_lshrrev_b32 v3, 6, v0')
    e('s_lshl_b32 s18, s17, 6\nv_lshlrev_b32 v3, 4, v3\nv_add_u32 v3, s18, v3\nv_add_u32 v3, v3, v1')
    e('v_subrev_u32 v4, 60, v3')
    e('v_mul_u32_u24 v5, 8928, v1\nv_lshlrev_b32 v6, 4, v2\nv_add_u32 v5, v5, v6')
    e('v_cmp_gt_u32 s[30:31], 2, v2')
    e('v_mov_b32 v9, 0x7f000000')
    for i in range(72): e(f'v_mov_b32 v{100+i}, 0')
    e('s_mov_b32 s19, 0')
    e('L_tap:')
    e('v_mul_i32_i24 v7, 288, v4\nv_add_u32 v7, v7, v6')
    e('v_cmp_gt_i32 vcc, 0, v4\ns_nop 1\nv_cndmask_b32 v7, v7, v9, vcc')
    e('v_cndmask_b32 v8, v9, v7, s[30:31]')
    e('v_cndmask_b32 v10, v9, v5, s[30:31]')
    for c in range(5):
        e(f'buffer_load_dwordx4 v[12:15], {"v7" if c < 4 else "v8"}, s[8:11], 0 offen offset:{64*c}')
        for j in range(18):
            e(f's_mov_b32 s28, {j*16*8928}')
            e(f'buffer_load_dwordx4 v[{16+4*j}:{19+4*j}], {"v5" if c < 4 else "v10"}, s[12:15], s28 offen offset:{64*c}')
        e('s_waitcnt vmcnt(0)')
        for j in range(18):
            e(f'v_mfma_f32_16x16x32_bf16 v[{100+4*j}:{103+4*j}], v[{16+4*j}:{19+4*j}], v[12:15], v[{100+4*j}:{103+4*j}]')
    e('v_add_u32 v4, 2, v4\nv_add_u32 v5, 288, v5')
    e('s_add_u32 s19, s19, 1\ns_cmp_lt_u32 s19, 31\ns_cbranch_scc1 L_tap')
    e('s_nop 15\ns_nop 15')
    if noise > 0:
        e('s_lshl_b32 s3, s2, 8\nv_add_u32 v20, s3, v0\ns_mov_b32 s40, 0x9E3779B1\ns_mov_b32 s41, 0x85EBCA6B')
        e('v_mul_u32_u24 v20, 72, v20')
        e(f's_mov_b32 s42, {fbits(noise/ (255*1.0/ (12**0.5) * 2.0))}')
        for i in range(72):
            e(f'v_add_u32 v21, {i}, v20\nv_mul_lo_u32 v21, s40, v21\nv_lshrrev_b32 v22, 15, v21\nv_xor_b32 v21, v21, v22')
            e('v_mul_lo_u32 v21, s41, v21\nv_lshrrev_b32 v22, 13, v21\nv_xor_b32 v21, v21, v22\nv_mul_lo_u32 v21, s40, v21\nv_lshrrev_b32 v22, 16, v21\nv_xor_b32 v21, v21, v22')
            e('v_mov_b32 v23, 0\nv_sad_u8 v22, v21, v23, v23\nv_cvt_f32_u32 v22, v22\nv_subrev_f32 v22, 0x43ff0000, v22')
            e(f'v_fma_f32 v{100+i}, v22, s42, v{100+i}')
    e(f's_mov_b32 s44, {fbits(-2*1.4426950408889634)}\ns_mov_b32 s45, {fbits(-1.4426950408889634)}')
    e('v_mul_u32_u24 v7, 288, v3\nv_lshlrev_b32 v6, 3, v2\nv_add_u32 v7, v7, v6')
    for j in range(9):
        for r in range(4):
            f = 100 + 4*j + r; g = 136 + 4*j + r
            e(f'v_mul_f32 v20, s44, v{f}\nv_mul_f32 v21, s45, v{g}\nv_exp_f32 v20, v20\nv_exp_f32 v21, v21\ns_nop 0')
            e(f'v_add_f32 v20, 1.0, v20\nv_add_f32 v21, 1.0, v21\nv_rcp_f32 v20, v20\nv_rcp_f32 v21, v21\ns_nop 0')
            e(f'v_fma_f32 v20, v20, 2.0, -1.0\nv_mul_f32 v{24+r}, v20, v21')
        e('v_cvt_pk_bf16_f32 v28, v24, v25\nv_cvt_pk_bf16_f32 v29, v26, v27')
        e(f'buffer_store_dwordx2 v[28:29], v7, s[24:27], 0 offen offset:{32*j}')
        e('s_waitcnt vmcnt(0)')
    e('L_m_done:\ns_endpgm')
    e('.section .rodata,"a"\n.p2align 6')
    e(kd('wt_kernel', 16, 16)); e('.p2align 6'); e(kd('main_kernel', 176, 176))
    return '\n'.join(L) + '\n'
if __name__ == '__main__':
    for n in [0, 0.003, 0.005, 0.008, 0.012, 0.02]:
        open(f'base_n{int(n*1000)}.s', 'w').write(gen(n))
```
